```python
import torch

def _softmax(x, axis=-1):
    return torch.softmax(x, dim=axis)
def _gelu(x):
    return torch.nn.functional.gelu(x, approximate="tanh")
def _silu(x):
    return torch.nn.functional.silu(x)
def _sigmoid(x):
    return torch.sigmoid(x)
def _layernorm(x, axis=-1, eps=1e-5):
    m = x.mean(dim=axis, keepdim=True)
    v = x.var(dim=axis, keepdim=True, unbiased=False)
    return (x - m) / torch.sqrt(v + eps)
def _scatter_add(tgt, idx, src, axis=0):
    return tgt.clone().index_add_(axis, idx, src)
def _segment_sum(src, seg, n):
    out = torch.zeros((n,) + src.shape[1:], dtype=src.dtype)
    return out.index_add_(0, seg, src)
def _pad(x, pw):
    flat = tuple(v for pair in reversed(pw) for v in pair)
    return torch.nn.functional.pad(x, flat)

kernel_name = 'gather_scatter__edge_featured_mpnn_gatedgcn__graph'

def setup_inputs():

    _w = (lambda a: (lambda t: t.to(torch.bfloat16) if t.is_floating_point() else t)(torch.as_tensor(a)))
    N, deg, D, De = 10000, 16, 256, max(0, 1)
    E = N * deg
    return {
        "x": _w((lambda *s: torch.randn(*s, dtype=torch.bfloat16) * 0.4)(N, D)),
        "e_attr": _w((lambda *s: torch.randn(*s, dtype=torch.bfloat16) * 0.8)(E, De)),
        "src": _w((lambda lo, hi, *s: torch.randint(lo, hi, s))(0, N, E).to(torch.int64)),
        "dst": _w((lambda lo, hi, *s: torch.randint(lo, hi, s))(0, N, E).to(torch.int64)),
        "w_a": _w((lambda *s: torch.randn(*s, dtype=torch.bfloat16) * 0.4)(D, D)),
        "w_b": _w((lambda *s: torch.randn(*s, dtype=torch.bfloat16) * 0.4)(D, D)),
        "w_c": _w((lambda *s: torch.randn(*s, dtype=torch.bfloat16) * 0.8)(De, D)),
        "w_u": _w((lambda *s: torch.randn(*s, dtype=torch.bfloat16) * 0.05)(D, D)),
        "w_v": _w((lambda *s: torch.randn(*s, dtype=torch.bfloat16) * 0.05)(D, D)),
    }

def reference(x, e_attr, src, dst, w_a, w_b, w_c, w_u, w_v):
    N, D = x.shape
    hv = x @ w_v
    g = x[dst] @ w_a + x[src] @ w_b + e_attr @ w_c
    eta = _sigmoid(g)
    denom = _segment_sum(eta, dst, N) + 1e-6
    eta_n = eta / denom[dst]
    agg = _segment_sum(eta_n * hv[src], dst, N)
    z = x @ w_u + agg
    relu_z = torch.where(z > 0, z, 0 * z)
    return x + relu_z
```

```python
class Asm:
    nlabel = 0
    def __init__(self):
        self.lines = []
    def __call__(self, s=''):
        for l in s.split('\n'):
            self.lines.append('  ' + l.strip() if l.strip() and not l.strip().endswith(':') else l.strip())
    def label(self, name):
        self.lines.append(name + ':')
    def newlabel(self, base='L'):
        Asm.nlabel += 1
        return f'{base}_{Asm.nlabel}'
    def comment(self, s):
        self.lines.append('  ; ' + s)
    def text(self):
        return '\n'.join(self.lines) + '\n'

def v(a, n=1):
    return f'v{a}' if n == 1 else f'v[{a}:{a+n-1}]'
def s(a, n=1):
    return f's{a}' if n == 1 else f's[{a}:{a+n-1}]'

class RegAlloc:
    def __init__(self, start, limit, kind='v'):
        self.next = start; self.limit = limit; self.kind = kind; self.names = {}; self.hw = start
    def alloc(self, name, n=1, align=1):
        a = (self.next + align - 1) // align * align
        if a + n > self.limit:
            raise Exception(f'out of {self.kind} regs allocating {name} ({n}) at {a}')
        self.next = a + n
        self.hw = max(self.hw, self.next)
        self.names[name] = a
        return a
    def mark(self): return self.next
    def release(self, m): self.next = m

def descriptor(name, vgpr, sgpr, kernarg=96):
    acc = (vgpr + 3) // 4 * 4
    return f'''.section .rodata,"a"
.p2align 6
.amdhsa_kernel {name}
  .amdhsa_next_free_vgpr {vgpr}
  .amdhsa_next_free_sgpr {sgpr}
  .amdhsa_accum_offset {acc}
  .amdhsa_group_segment_fixed_size 0
  .amdhsa_kernarg_size {kernarg}
  .amdhsa_user_sgpr_count 2
  .amdhsa_user_sgpr_kernarg_segment_ptr 1
  .amdhsa_system_sgpr_workgroup_id_x 1
  .amdhsa_float_denorm_mode_32 3
  .amdhsa_float_denorm_mode_16_64 3
.end_amdhsa_kernel
.text
'''
def header(name):
    return f'''.globl {name}
.p2align 8
.type {name},@function
{name}:
'''
```

```python
N = 10000; E = 160000; D = 256
RNG = 157; NR = 64
CH = 640; NCH = 250; CAP = 32
POFF = 4096; PS = N*256
FOFF = 0x00B00000; FSIZE = 64*256*CAP*8
COFF = 0x00F00000; CSIZE = 64*256*4
XBASE = 16384; WBASE = 98304; LDS_TOTAL = 163840
XKC = 20480; WKC = 16384; WMAT = 8192
NEG_LOG2E = 0xBFB8AA3B
MAGIC157 = 6679
DEG = 0; BINH = 640; FLAG = 896; NBASE = 1024; NPAD = 1664; PERM = 2304; DEGS = 2944; TMPO = 3584; OFFO = 3840; QOF = 4096; TOTS = 4352
AREG = XBASE; XUREG = XBASE + 40960; STREAM = WBASE; STREAM_CAP = (LDS_TOTAL - WBASE)//64 - 8
KTAB = sum(k << (2*i) for i, k in enumerate([0,1,1,0,2,2,3,3,3,2]))
OTAB = sum(k << (2*i) for i, k in enumerate([0,0,1,1,0,1,0,1,2,2]))
EPS_BITS = 0x358637BD
```

```python
from asmlib import *
from consts import *

def emit_lane_consts(a, vLane, vTmp):
    a(f'v_and_b32 {v(vLane)}, 63, v0')

def emit_dma_setup(a, vLane, vXoff, vWoff, vT, sWave, sT):
    a(f'''v_lshrrev_b32 {v(vT)}, 4, {v(vLane)}
    v_and_b32 {v(vXoff)}, 7, {v(vLane)}
    v_xor_b32 {v(vXoff)}, {v(vXoff)}, {v(vT)}
    v_lshlrev_b32 {v(vXoff)}, 4, {v(vXoff)}
    s_and_b32 {s(sT)}, {s(sWave)}, 1
    s_lshl_b32 {s(sT)}, {s(sT)}, 6
    v_xor_b32 {v(vXoff)}, {s(sT)}, {v(vXoff)}
    v_and_b32 {v(vT)}, 1, {v(vT)}
    v_lshlrev_b32 {v(vT)}, 2, {v(vT)}
    v_and_b32 {v(vWoff)}, 7, {v(vLane)}
    v_xor_b32 {v(vWoff)}, {v(vWoff)}, {v(vT)}
    v_lshlrev_b32 {v(vWoff)}, 4, {v(vWoff)}
    v_lshrrev_b32 {v(vT)}, 3, {v(vLane)}
    v_lshlrev_b32 {v(vT)}, 9, {v(vT)}
    v_add_u32 {v(vXoff)}, {v(vXoff)}, {v(vT)}
    v_add_u32 {v(vWoff)}, {v(vWoff)}, {v(vT)}''')

def emit_dma(a, vXoff, vWoff, srdX, srdW, sWave, sA, sB, sC):
    L4 = a.newlabel('DMA4')
    a(f'''s_lshl_b32 {s(sA)}, {s(sWave)}, 10
    s_add_u32 {s(sA)}, {s(sA)}, {XBASE}
    s_lshl_b32 {s(sB)}, {s(sWave)}, 12
    s_and_b32 {s(sC)}, {s(sWave)}, 7
    s_lshl_b32 {s(sC+1)}, {s(sC)}, 12
    s_lshl_b32 {s(sC)}, {s(sC)}, 10
    s_lshr_b32 {s(sC+2)}, {s(sWave)}, 3
    s_lshl_b32 {s(sC+2)}, {s(sC+2)}, 13
    s_add_u32 {s(sC)}, {s(sC)}, {s(sC+2)}
    s_add_u32 {s(sC)}, {s(sC)}, {WBASE}''')
    for kc in range(4):
        a(f'''s_add_u32 m0, {s(sC)}, {kc*WKC}
        s_add_u32 {s(sC+2)}, {s(sC+1)}, {kc*64*512}
        buffer_load_dwordx4 {v(vWoff)}, {s(srdW,4)}, {s(sC+2)} offen lds
        s_add_u32 m0, {s(sA)}, {kc*XKC}
        s_add_u32 {s(sC+2)}, {s(sB)}, {kc*128}
        buffer_load_dwordx4 {v(vXoff)}, {s(srdX,4)}, {s(sC+2)} offen lds''')
    a(f's_cmp_ge_u32 {s(sWave)}, 4')
    a(f's_cbranch_scc1 {L4}')
    for kc in range(4):
        a(f'''s_add_u32 m0, {s(sA)}, {kc*XKC + 16*1024}
        s_add_u32 {s(sC+2)}, {s(sB)}, {kc*128 + 16*4096}
        buffer_load_dwordx4 {v(vXoff)}, {s(srdX,4)}, {s(sC+2)} offen lds''')
    a.label(L4)

def emit_frag_addrs(a, vLane, vXa, vWa, vT, vT2, sTile, sFh, sT):
    a(f'''v_lshrrev_b32 {v(vT)}, 1, {v(vLane)}
    v_and_b32 {v(vT)}, 7, {v(vT)}
    v_lshrrev_b32 {v(vT2)}, 5, {v(vLane)}
    v_xor_b32 {v(vT)}, {v(vT)}, {v(vT2)}
    v_and_b32 {v(vT2)}, 31, {v(vLane)}
    v_lshlrev_b32 {v(vT2)}, 7, {v(vT2)}
    s_lshl_b32 {s(sT)}, {s(sTile)}, 12
    s_add_u32 {s(sT)}, {s(sT)}, {XBASE}
    v_add_u32 {v(vT2)}, {s(sT)}, {v(vT2)}''')
    for ks in range(4):
        a(f'v_xor_b32 {v(vXa+ks)}, {2*ks}, {v(vT)}')
        a(f'v_lshl_add_u32 {v(vXa+ks)}, {v(vXa+ks)}, 4, {v(vT2)}')
    a(f'''v_lshrrev_b32 {v(vT)}, 4, {v(vLane)}
    v_and_b32 {v(vT)}, 1, {v(vT)}
    v_lshlrev_b32 {v(vT)}, 1, {v(vT)}
    v_bfe_u32 {v(vT2)}, {v(vLane)}, 1, 1
    v_add_u32 {v(vT)}, {v(vT)}, {v(vT2)}
    s_lshl_b32 {s(sT)}, {s(sFh)}, 2
    v_add_u32 {v(vT)}, {s(sT)}, {v(vT)}
    v_bfe_u32 {v(vT2)}, {v(vLane)}, 3, 1
    v_lshlrev_b32 {v(vT2)}, 2, {v(vT2)}
    v_xor_b32 {v(vT)}, {v(vT)}, {v(vT2)}
    v_lshlrev_b32 {v(vWa)}, 4, {v(vT)}
    v_and_b32 {v(vT)}, 1, {v(vLane)}
    v_lshl_add_u32 {v(vWa)}, {v(vT)}, 3, {v(vWa)}
    v_bfe_u32 {v(vT)}, {v(vLane)}, 2, 2
    v_lshrrev_b32 {v(vT2)}, 5, {v(vLane)}
    v_lshl_add_u32 {v(vT)}, {v(vT2)}, 3, {v(vT)}
    v_lshl_add_u32 {v(vWa)}, {v(vT)}, 7, {v(vWa)}
    v_add_u32 {v(vWa)}, {WBASE}, {v(vWa)}''')

def emit_mfma_loop(a, vXa, vWa, ring, acc0, acc1):
    def loads(n):
        kc, ks = n >> 2, n & 3
        b = ring + 12*(n % 3)
        a(f'ds_read_b128 {v(b,4)}, {v(vXa+ks)} offset:{kc*XKC}')
        for m in range(2):
            o = kc*WKC + m*WMAT + ks*16*128
            a(f'ds_read_b64_tr_b16 {v(b+4+4*m,2)}, {v(vWa)} offset:{o}')
            a(f'ds_read_b64_tr_b16 {v(b+6+4*m,2)}, {v(vWa)} offset:{o+512}')
    loads(0); loads(1)
    for n in range(16):
        if n+2 < 16:
            loads(n+2); a('s_waitcnt lgkmcnt(10)')
        elif n == 14: a('s_waitcnt lgkmcnt(5)')
        else: a('s_waitcnt lgkmcnt(0)')
        b = ring + 12*(n % 3)
        a(f'v_mfma_f32_32x32x16_bf16 {v(acc0,16)}, {v(b+4,4)}, {v(b,4)}, {v(acc0,16)}')
        a(f'v_mfma_f32_32x32x16_bf16 {v(acc1,16)}, {v(b+8,4)}, {v(b,4)}, {v(acc1,16)}')
```

```python
from asmlib import *
from consts import *
from gemm import *

def srd(a, d, base_lo, base_hi, size, w3='0x00020000'):
    a(f's_mov_b32 {s(d)}, {base_lo}')
    a(f's_and_b32 {s(d+1)}, {base_hi}, 0xffff')
    a(f's_mov_b32 {s(d+2)}, {size}')
    a(f's_mov_b32 {s(d+3)}, {w3}')

def emit_pass1(a, sChunk, vLane, R):
    srdDst, srdSrc, srdE, srdF, srdC = R['srdDst'], R['srdSrc'], R['srdE'], R['srdF'], R['srdC']
    b = R['p1']
    vD, vS, vE, vRk, vB = b, b+10, b+20, b+30, b+40
    vO4, vO2, vT, vT2, vOne = b+50, b+51, b+52, b+54, b+56
    sO = R['sT1']; sO2 = R['sT2']
    return dict(vD=vD, vS=vS, vE=vE, vRk=vRk, vB=vB, vO4=vO4, vO2=vO2, vT=vT, vT2=vT2, vOne=vOne)

def pass1_issue(a, sChunk, vLane, R):
    P = emit_pass1(None, sChunk, vLane, R)
    sO, sO2 = R['sT1'], R['sT2']
    a(f'''v_lshlrev_b32 {v(P['vO4'])}, 2, {v(vLane)}
    v_lshlrev_b32 {v(P['vO2'])}, 1, {v(vLane)}
    v_mov_b32 {v(P['vT'])}, 0
    ds_write_b32 {v(P['vO4'])}, {v(P['vT'])}
    s_mul_i32 {s(sO)}, {s(sChunk)}, {CH*4}
    s_mul_i32 {s(sO2)}, {s(sChunk)}, {CH*2}''')
    for j in range(10):
        a(f'buffer_load_dword {v(P["vD"]+j)}, {v(P["vO4"])}, {s(R["srdDst"],4)}, {s(sO)} offen offset:{j*256}')
    for j in range(10):
        a(f'buffer_load_dword {v(P["vS"]+j)}, {v(P["vO4"])}, {s(R["srdSrc"],4)}, {s(sO)} offen offset:{j*256}')
    for j in range(10):
        a(f'buffer_load_ushort {v(P["vE"]+j)}, {v(P["vO2"])}, {s(R["srdE"],4)}, {s(sO2)} offen offset:{j*128}')

def pass1_finish(a, sChunk, vLane, R, store_flags=''):
    P = emit_pass1(None, sChunk, vLane, R)
    vD, vS, vE, vRk, vB, vT, vT2, vOne = P['vD'], P['vS'], P['vE'], P['vRk'], P['vB'], P['vT'], P['vT2'], P['vOne']
    sM, sT = R['sT1'], R['sT2']
    a(f's_mov_b32 {s(sM)}, {MAGIC157}')
    a(f'v_mov_b32 {v(vOne)}, 1')
    a('s_waitcnt vmcnt(20)')
    for j in range(10):
        a(f'v_mul_u32_u24 {v(vB+j)}, {s(sM)}, {v(vD+j)}')
        a(f'v_lshrrev_b32 {v(vB+j)}, 20, {v(vB+j)}')
        a(f'v_lshlrev_b32 {v(vT+(j&1))}, 2, {v(vB+j)}')
        a(f'ds_add_rtn_u32 {v(vRk+j)}, {v(vT+(j&1))}, {v(vOne)}')
    a(f's_movk_i32 {s(sM)}, {RNG}')
    for j in range(10):
        a(f'v_mul_u32_u24 {v(vT)}, {s(sM)}, {v(vB+j)}')
        a(f'v_sub_u32 {v(vD+j)}, {v(vD+j)}, {v(vT)}')
    a('s_waitcnt vmcnt(0)')
    for j in range(10):
        a(f'v_lshl_or_b32 {v(vS+j)}, {v(vS+j)}, 8, {v(vD+j)}')
        a(f'v_lshlrev_b32 {v(vE+j)}, 16, {v(vE+j)}')
    a(f's_lshl_b32 {s(sT)}, {s(sChunk)}, 8')
    a('s_waitcnt lgkmcnt(0)')
    for j in range(10):
        a(f'v_lshlrev_b32 {v(vB+j)}, 16, {v(vB+j)}')
        a(f'v_lshl_add_u32 {v(vB+j)}, {v(vRk+j)}, 3, {v(vB+j)}')
        a(f'v_cmp_gt_u32 vcc, {CAP}, {v(vRk+j)}')
        a('s_nop 1')
        a(f'v_cndmask_b32 {v(vB+j)}, -1, {v(vB+j)}, vcc')
    pb = R['p1'] + 60
    for j in range(10):
        q = pb + 2*(j % 2)
        a(f'v_mov_b32 {v(q)}, {v(vS+j)}')
        a(f'v_mov_b32 {v(q+1)}, {v(vE+j)}')
        a(f'buffer_store_dwordx2 {v(q,2)}, {v(vB+j)}, {s(R["srdF"],4)}, {s(sT)} offen {store_flags}')
    a(f'ds_read_b32 {v(vT)}, {v(P["vO4"])}')
    a(f'v_lshlrev_b32 {v(vT2)}, 10, {v(vLane)}')
    a(f's_lshl_b32 {s(sT)}, {s(sChunk)}, 2')
    a('s_waitcnt lgkmcnt(0)')
    a(f'buffer_store_dword {v(vT)}, {v(vT2)}, {s(R["srdC"],4)}, {s(sT)} offen {store_flags}')

def build_k1(name):
    a = Asm()
    END = a.newlabel('K1END')
    R = dict(srdX=20, srdWb=24, srdWv=28, srdP=32, srdDst=36, srdSrc=40, srdE=44, srdF=48, srdC=52, srdW=56,
             sT1=60, sT2=61, p1=8)
    sWave, sR, sSl, sTile, sFh = 3, 62, 63, 64, 65
    sA, sB, sC = 66, 67, 68
    sT = 72
    a(f'''s_cmp_ge_u32 s2, 256
    s_cbranch_scc1 {END}
    s_load_dwordx2 s[4:5], s[0:1], 0
    s_load_dwordx4 s[8:11], s[0:1], 8
    s_load_dwordx2 s[12:13], s[0:1], 24
    s_load_dwordx2 s[14:15], s[0:1], 40
    s_load_dwordx2 s[16:17], s[0:1], 64
    s_load_dwordx2 s[18:19], s[0:1], 88
    v_readfirstlane_b32 {s(sWave)}, v0
    v_and_b32 v1, 63, v0
    s_and_b32 {s(sR)}, s2, 7
    s_lshr_b32 {s(sSl)}, s2, 3
    s_lshr_b32 {s(sT)}, {s(sSl)}, 2
    s_lshl_b32 {s(sT)}, {s(sT)}, 3
    s_add_u32 {s(sR)}, {s(sR)}, {s(sT)}
    s_and_b32 {s(sSl)}, {s(sSl)}, 3
    s_lshr_b32 {s(sWave)}, {s(sWave)}, 6''')
    vLane, vXoff, vWoff, vT, vT2 = 1, 2, 3, 4, 5
    emit_dma_setup(a, vLane, vXoff, vWoff, vT, sWave, sT)
    a('s_waitcnt lgkmcnt(0)')
    a(f'''s_mul_i32 {s(sT)}, {s(sR)}, {RNG*512}
    s_add_u32 s4, s4, {s(sT)}
    s_addc_u32 s5, s5, 0
    s_sub_u32 {s(sT+1)}, {N*512}, {s(sT)}''')
    srd(a, R['srdX'], 's4', 's5', s(sT+1))
    a(f'''s_lshl_b32 {s(sT)}, {s(sSl)}, 7
    s_add_u32 s14, s14, {s(sT)}
    s_addc_u32 s15, s15, 0
    s_add_u32 s16, s16, {s(sT)}
    s_addc_u32 s17, s17, 0
    s_sub_u32 {s(sT+1)}, {256*512}, {s(sT)}
    s_cmp_ge_u32 {s(sWave)}, 8
    s_cselect_b32 s14, s16, s14
    s_cselect_b32 s15, s17, s15''')
    srd(a, R['srdW'], 's14', 's15', s(sT+1))
    emit_dma(a, vXoff, vWoff, R['srdX'], R['srdW'], sWave, sA, sB, sC)
    a(f'''s_mul_i32 {s(sT)}, {s(sSl)}, {PS}
    s_mul_i32 {s(sT+1)}, {s(sR)}, {RNG*256}
    s_add_u32 {s(sT)}, {s(sT)}, {s(sT+1)}
    s_add_u32 {s(sT)}, {s(sT)}, {POFF}
    s_add_u32 {s(sT+2)}, s18, {s(sT)}
    s_addc_u32 {s(sT+3)}, s19, 0
    s_sub_u32 {s(sT+1)}, {N*256}, {s(sT+1)}
    s_min_u32 {s(sT+1)}, {s(sT+1)}, {RNG*256}''')
    srd(a, R['srdP'], s(sT+2), s(sT+3), s(sT+1))
    LP1 = a.newlabel('P1'); LG = a.newlabel('GEMM'); LW = a.newlabel('WAITDMA')
    a(f's_cmp_eq_u32 {s(sWave)}, 15')
    a(f's_cbranch_scc1 {LP1}')
    a('s_waitcnt vmcnt(0)')
    a('s_barrier')
    a(f's_cmp_ge_u32 {s(sWave)}, 10')
    a(f's_cbranch_scc1 {END}')
    a(f'''s_cmp_ge_u32 {s(sWave)}, 5
    s_cselect_b32 {s(sFh)}, 1, 0
    s_mul_i32 {s(sT)}, {s(sFh)}, 5
    s_sub_u32 {s(sTile)}, {s(sWave)}, {s(sT)}''')
    vXa, vWa, ring, acc0, acc1 = 8, 12, 16, 52, 68
    emit_frag_addrs(a, vLane, vXa, vWa, vT, vT2, sTile, sFh, sT)
    for i in range(16):
        a(f'v_mov_b32 {v(acc0+i)}, 0')
        a(f'v_mov_b32 {v(acc1+i)}, 0')
    emit_mfma_loop(a, vXa, vWa, ring, acc0, acc1)
    vPo = 84
    a(f'''v_and_b32 {v(vT)}, 31, {v(vLane)}
    v_lshlrev_b32 {v(vPo)}, 8, {v(vT)}
    v_lshrrev_b32 {v(vT)}, 5, {v(vLane)}
    v_lshl_add_u32 {v(vPo)}, {v(vT)}, 4, {v(vPo)}
    s_lshl_b32 {s(sT)}, {s(sTile)}, 13
    s_lshl_b32 {s(sT+1)}, {s(sFh)}, 7
    s_add_u32 {s(sT)}, {s(sT)}, {s(sT+1)}
    s_mov_b32 {s(sT+2)}, {hex(NEG_LOG2E)}
    s_mov_b32 {s(sT+3)}, {hex(NEG_LOG2E)}
    s_nop 7''')
    O = 88
    for i in range(4):
        o = O + 4*i
        a(f'v_pk_mul_f32 {v(acc0+4*i,2)}, {v(acc0+4*i,2)}, {s(sT+2,2)}')
        a(f'v_pk_mul_f32 {v(acc0+4*i+2,2)}, {v(acc0+4*i+2,2)}, {s(sT+2,2)}')
        a(f'v_cvt_pk_bf16_f32 {v(o+2)}, {v(acc1+4*i)}, {v(acc1+4*i+1)}')
        a(f'v_cvt_pk_bf16_f32 {v(o+3)}, {v(acc1+4*i+2)}, {v(acc1+4*i+3)}')
        a(f'v_cvt_pk_bf16_f32 {v(o)}, {v(acc0+4*i)}, {v(acc0+4*i+1)}')
        a(f'v_cvt_pk_bf16_f32 {v(o+1)}, {v(acc0+4*i+2)}, {v(acc0+4*i+3)}')
        a(f'buffer_store_dwordx4 {v(o,4)}, {v(vPo)}, {s(R["srdP"],4)}, {s(sT)} offen offset:{i*32}')
    a('s_endpgm')
    a.label(LP1)
    srd(a, R['srdDst'], 's12', 's13', E*4)
    srd(a, R['srdSrc'], 's10', 's11', E*4)
    srd(a, R['srdE'], 's8', 's9', E*2)
    a(f's_add_u32 {s(sT)}, s18, {FOFF}\n s_addc_u32 {s(sT+1)}, s19, 0')
    srd(a, R['srdF'], s(sT), s(sT+1), FSIZE)
    a(f's_add_u32 {s(sT)}, s18, {COFF}\n s_addc_u32 {s(sT+1)}, s19, 0')
    srd(a, R['srdC'], s(sT), s(sT+1), CSIZE)
    LNO = a.newlabel('NOP1')
    a(f's_cmp_ge_u32 s2, {NCH}')
    a(f's_cbranch_scc1 {LNO}')
    pass1_issue(a, 2, vLane, R)
    a('s_waitcnt vmcnt(30)')
    a('s_barrier')
    pass1_finish(a, 2, vLane, R)
    a('s_endpgm')
    a.label(LNO)
    a('s_waitcnt vmcnt(0)')
    a('s_barrier')
    a.label(END)
    a('s_endpgm')
    return header(name) + a.text() + descriptor(name, 104, 80)
```

```python
from asmlib import *
from consts import *
from gemm import *
from k1 import srd

def scan64(a, vx, nop=True):
    for d in (1, 2, 4, 8):
        a('s_nop 1')
        a(f'v_add_u32_dpp {v(vx)}, {v(vx)}, {v(vx)} row_shr:{d} row_mask:0xf bank_mask:0xf bound_ctrl:0')
    a('s_nop 1')
    a(f'v_add_u32_dpp {v(vx)}, {v(vx)}, {v(vx)} row_bcast:15 row_mask:0xa bank_mask:0xf')
    a('s_nop 1')
    a(f'v_add_u32_dpp {v(vx)}, {v(vx)}, {v(vx)} row_bcast:31 row_mask:0xc bank_mask:0xf')
    a('s_nop 1')

def emit_step2(a, vLane, b, sT):
    vN, vDg, vKey, vRk, vPos = b, b+3, b+6, b+9, b+12
    vA, vB, vC, vD = b+16, b+17, b+18, b+19
    vQ4 = b+20
    vSt, vO, vOff, vOne = b+24, b+25, b+26, b+27
    a(f'v_mov_b32 {v(vOne)}, 1')
    for j in range(3):
        a(f'v_add_u32 {v(vN+j)}, {64*j}, {v(vLane)}')
        a(f'v_lshlrev_b32 {v(vA)}, 2, {v(vN+j)}')
        if j == 2: a('s_mov_b32 exec_hi, 0')
        a(f'ds_read_b32 {v(vDg+j)}, {v(vA)} offset:{DEG}')
    a('s_mov_b64 exec, -1')
    a('s_waitcnt lgkmcnt(0)')
    a(f'v_mov_b32 {v(vDg+2+0)}, {v(vDg+2)}')
    a(f'v_max3_u32 {v(vA)}, {v(vDg)}, {v(vDg+1)}, 0')
    a('s_mov_b32 exec_hi, 0')
    a(f'v_max_u32 {v(vA)}, {v(vA)}, {v(vDg+2)}')
    a('s_mov_b64 exec, -1')
    a(f'v_cmp_lt_u32 vcc, 63, {v(vA)}')
    L1 = a.newlabel('S2A')
    a(f's_cbranch_vccz {L1}')
    a(f'v_mov_b32 {v(vB)}, 0')
    a(f'ds_write_b32 {v(vB)}, {v(vOne)} offset:{FLAG}')
    a.label(L1)
    for j in range(3):
        if j == 2: a('s_mov_b32 exec_hi, 0')
        a(f'v_min_u32 {v(vKey+j)}, 63, {v(vDg+j)}')
        a(f'v_sub_u32 {v(vKey+j)}, 63, {v(vKey+j)}')
        a(f'v_lshlrev_b32 {v(vKey+j)}, 2, {v(vKey+j)}')
        a(f'ds_add_rtn_u32 {v(vRk+j)}, {v(vKey+j)}, {v(vOne)} offset:{BINH}')
    a('s_mov_b64 exec, -1')
    a(f'v_lshlrev_b32 {v(vA)}, 2, {v(vLane)}')
    a('s_waitcnt lgkmcnt(0)')
    a(f'ds_read_b32 {v(vB)}, {v(vA)} offset:{BINH}')
    a('s_waitcnt lgkmcnt(0)')
    a(f'v_mov_b32 {v(vC)}, {v(vB)}')
    scan64(a, vC)
    a(f'v_sub_u32 {v(vC)}, {v(vC)}, {v(vB)}')
    for j in range(3):
        a(f'ds_bpermute_b32 {v(vPos+j)}, {v(vKey+j)}, {v(vC)}')
    a('s_waitcnt lgkmcnt(0)')
    for j in range(3):
        if j == 2: a('s_mov_b32 exec_hi, 0')
        a(f'v_add_u32 {v(vPos+j)}, {v(vPos+j)}, {v(vRk+j)}')
        a(f'v_lshlrev_b32 {v(vA)}, 2, {v(vPos+j)}')
        a(f'ds_write_b32 {v(vA)}, {v(vN+j)} offset:{PERM}')
        a(f'ds_write_b32 {v(vA)}, {v(vDg+j)} offset:{DEGS}')
    a('s_mov_b64 exec, -1')
    a(f'v_lshlrev_b32 {v(vA)}, 4, {v(vLane)}')
    a('s_waitcnt lgkmcnt(0)')
    a(f'v_mov_b32 {v(vSt)}, 0')
    a('s_mov_b32 exec_hi, 0xff')
    a(f'ds_read_b32 {v(vSt)}, {v(vA)} offset:{DEGS}')
    a('s_waitcnt lgkmcnt(0)')
    a(f'v_min_u32 {v(vSt)}, 63, {v(vSt)}')
    a(f'v_add_u32 {v(vSt)}, 1, {v(vSt)}')
    a(f'v_lshrrev_b32 {v(vSt)}, 1, {v(vSt)}')
    a(f'''v_lshrrev_b32 {v(vA)}, 2, {v(vLane)}
    v_and_b32 {v(vB)}, 3, {v(vLane)}
    v_and_b32 {v(vC)}, 1, {v(vA)}
    v_mul_u32_u24 {v(vC)}, 3, {v(vC)}
    v_xor_b32 {v(vB)}, {v(vB)}, {v(vC)}
    v_lshlrev_b32 {v(vA)}, 1, {v(vA)}
    s_mov_b32 {s(sT)}, {KTAB}
    v_lshrrev_b32 {v(vC)}, {v(vA)}, {s(sT)}
    v_and_b32 {v(vC)}, 3, {v(vC)}
    s_mov_b32 {s(sT)}, {OTAB}
    v_lshrrev_b32 {v(vD)}, {v(vA)}, {s(sT)}
    v_and_b32 {v(vD)}, 3, {v(vD)}
    v_lshrrev_b32 {v(vA)}, 1, {v(vC)}
    v_add_u32 {v(vA)}, 2, {v(vA)}
    v_mul_u32_u24 {v(vB)}, {v(vB)}, {v(vA)}
    v_add_u32 {v(vD)}, {v(vD)}, {v(vB)}
    v_lshl_add_u32 {v(vD)}, {v(vC)}, 3, {v(vD)}
    v_cmp_eq_u32 vcc, 3, {v(vC)}
    s_nop 1
    v_cndmask_b32 {v(vA)}, 0, 4, vcc
    v_add_lshl_u32 {v(vO)}, {v(vD)}, {v(vA)}, 2''')
    a(f'ds_write_b32 {v(vO)}, {v(vSt)} offset:{TMPO}')
    a(f'ds_write_b32 {v(vO)}, {v(vLane)} offset:{QOF}')
    a('s_mov_b64 exec, -1')
    a(f'v_lshlrev_b32 {v(vA)}, 2, {v(vLane)}')
    a(f'v_mov_b32 {v(vB)}, 0')
    a('s_waitcnt lgkmcnt(0)')
    a('s_mov_b32 exec_hi, 0xff')
    a(f'ds_read_b32 {v(vB)}, {v(vA)} offset:{TMPO}')
    a('s_mov_b64 exec, -1')
    a('s_waitcnt lgkmcnt(0)')
    a(f'v_mov_b32 {v(vC)}, {v(vB)}')
    scan64(a, vC)
    a(f'v_readlane_b32 {s(sT)}, {v(vC)}, 63')
    a(f'v_sub_u32 {v(vC)}, {v(vC)}, {v(vB)}')
    a(f'ds_write_b32 {v(vA)}, {v(vC)} offset:{OFFO}')
    a(f'ds_bpermute_b32 {v(vOff)}, {v(vO)}, {v(vC)}')
    a(f'v_mov_b32 {v(vB)}, {s(sT)}')
    a(f'v_mov_b32 {v(vA)}, 0')
    a(f'ds_write_b32 {v(vA)}, {v(vB)} offset:{TOTS}')
    L2 = a.newlabel('S2B')
    a(f's_cmp_le_u32 {s(sT)}, {STREAM_CAP}')
    a(f's_cbranch_scc1 {L2}')
    a(f'ds_write_b32 {v(vA)}, {v(vOne)} offset:{FLAG}')
    a.label(L2)
    a('s_waitcnt lgkmcnt(0)')
    for j in range(3):
        a(f'v_and_b32 {v(vKey+j)}, -4, {v(vPos+j)}')
        a(f'ds_bpermute_b32 {v(vRk+j)}, {v(vKey+j)}, {v(vOff)}')
        a(f'ds_bpermute_b32 {v(vKey+j)}, {v(vKey+j)}, {v(vSt)}')
    a('s_waitcnt lgkmcnt(0)')
    for j in range(3):
        if j == 2: a('s_mov_b32 exec_hi, 0')
        a(f'v_and_b32 {v(vA)}, 3, {v(vPos+j)}')
        a(f'v_lshlrev_b32 {v(vB)}, 6, {v(vRk+j)}')
        a(f'v_lshl_add_u32 {v(vB)}, {v(vA)}, 4, {v(vB)}')
        a(f'v_add_u32 {v(vB)}, {STREAM}, {v(vB)}')
        a(f'v_sub_u32 {v(vA)}, 3, {v(vA)}')
        a(f'v_lshl_or_b32 {v(vB)}, {v(vA)}, 24, {v(vB)}')
        a(f'v_lshlrev_b32 {v(vC)}, 1, {v(vKey+j)}')
        a(f'v_lshlrev_b32 {v(vD)}, 2, {v(vN+j)}')
        a(f'ds_write_b32 {v(vD)}, {v(vB)} offset:{NBASE}')
        a(f'ds_write_b32 {v(vD)}, {v(vC)} offset:{NPAD}')
    a('s_mov_b64 exec, -1')
    a('s_waitcnt lgkmcnt(0)')

def emit_front(a, M_, Pq, epair, U, H, first_valu=None):
    bc = 'op_sel:[1,0,0] op_sel_hi:[1,1,1]'
    a(f'v_pk_fma_f32 {v(U,2)}, {v(epair,2)}, {v(M_["Wc"],2)}, {v(M_["A2"],2)} {bc}')
    a(f'v_pk_fma_f32 {v(U+2,2)}, {v(epair,2)}, {v(M_["Wc"]+2,2)}, {v(M_["A2"]+2,2)} {bc}')
    a(f'v_mfma_f32_4x4x4_16b_bf16 {v(H,4)}, {v(M_["I20"],2)}, {v(Pq+2,2)}, 0')
    a('s_nop 0')
    a(f'v_mfma_f32_4x4x4_16b_bf16 {v(U,4)}, {v(M_["I"],2)}, {v(Pq,2)}, {v(U,4)}')
    a('s_nop 4')

def emit_sub(a, M_, Ucur, Hcur, Pn, en, Un, Hn, pre_mem=None):
    bc = 'op_sel:[1,0,0] op_sel_hi:[1,1,1]'
    T, C, S, Nn, Mm = M_['T'], M_['C'], M_['S'], M_['N'], M_['M']
    a(f'v_pk_fma_f32 {v(Un,2)}, {v(en,2)}, {v(M_["Wc"],2)}, {v(M_["A2"],2)} {bc}')
    a(f'v_pk_fma_f32 {v(Un+2,2)}, {v(en,2)}, {v(M_["Wc"]+2,2)}, {v(M_["A2"]+2,2)} {bc}')
    a(f'v_mfma_f32_4x4x4_16b_bf16 {v(Hn,4)}, {v(M_["I20"],2)}, {v(Pn+2,2)}, 0')
    for i in range(2): a(f'v_exp_f32 {v(Ucur+i)}, {v(Ucur+i)}')
    a(f'v_mfma_f32_4x4x4_16b_bf16 {v(Un,4)}, {v(M_["I"],2)}, {v(Pn,2)}, {v(Un,4)}')
    for i in range(2, 4): a(f'v_exp_f32 {v(Ucur+i)}, {v(Ucur+i)}')
    if pre_mem: pre_mem()
    a(f'v_pk_mul_f32 {v(T,2)}, {v(Hcur,2)}, {v(Mm,2)}')
    a(f'v_pk_mul_f32 {v(T+2,2)}, {v(Hcur+2,2)}, {v(Mm+2,2)}')
    a(f'v_pk_add_f32 {v(Ucur,2)}, {v(Ucur,2)}, {v(C,2)}')
    a(f'v_pk_add_f32 {v(Ucur+2,2)}, {v(Ucur+2,2)}, {v(C+2,2)}')
    a(f's_mov_b64 exec, {s(M_["sMask"],2)}')
    a(f'v_pk_fma_f32 {v(S,2)}, {v(S,2)}, {v(Ucur,2)}, {v(Mm,2)}')
    a(f'v_pk_fma_f32 {v(S+2,2)}, {v(S+2,2)}, {v(Ucur+2,2)}, {v(Mm+2,2)}')
    a(f'v_pk_fma_f32 {v(Nn,2)}, {v(Nn,2)}, {v(Ucur,2)}, {v(T,2)}')
    a(f'v_pk_fma_f32 {v(Nn+2,2)}, {v(Nn+2,2)}, {v(Ucur+2,2)}, {v(T+2,2)}')
    a(f'v_pk_mul_f32 {v(Mm,2)}, {v(Mm,2)}, {v(Ucur,2)}')
    a(f'v_pk_mul_f32 {v(Mm+2,2)}, {v(Mm+2,2)}, {v(Ucur+2,2)}')
    a('s_mov_b64 exec, -1')

def emit_loads(a, M_, slot, addtid):
    rec = M_['rec'] + 4*slot; P = M_['P'] + 8*slot
    if not addtid:
        a(f'v_add_u32 {v(rec)}, {v(rec)}, {v(M_["L16"])}')
        a(f'v_add_u32 {v(rec+2)}, {v(rec+2)}, {v(M_["L16"])}')
    a(f'buffer_load_dwordx4 {v(P,4)}, {v(rec)}, {s(M_["srdP"],4)}, 0 offen')
    a(f'buffer_load_dwordx4 {v(P+4,4)}, {v(rec+2)}, {s(M_["srdP"],4)}, 0 offen')

def emit_main(a, M_, addtid, END):
    EVH = a.newlabel('EVH'); SETUP = a.newlabel('SETUP')
    U0, U1, H0, H1 = M_['U0'], M_['U1'], M_['H0'], M_['H1']
    rec, P = M_['rec'], M_['P']
    sK, sEv, sFlag, sRet = M_['sK'], M_['sEv'], M_['sFlag'], M_['sRet']
    for k in range(4):
        a(f'ds_read_b128 {v(rec+4*k,4)}, {v(M_["Rec"])} offset:{k*64}')
    a('s_waitcnt lgkmcnt(0)')
    for k in range(3): emit_loads(a, M_, k, addtid)
    a(f's_call_b64 {s(sRet,2)}, {SETUP}')
    a('s_waitcnt vmcnt(4)')
    emit_front(a, M_, P, rec, U0, H0)
    LA = [a.newlabel('A') for _ in range(4)]
    for j in range(4):
        jn = (j+1) % 4; j3 = (j+3) % 4
        a.label(LA[j])
        a('s_waitcnt lgkmcnt(0)')
        emit_loads(a, M_, j3, addtid)
        def mem(j=j):
            a(f'ds_read_b128 {v(rec+4*j,4)}, {v(M_["Rec"])} offset:{(j+4)*64}')
            if j == 3: a(f'v_add_u32 {v(M_["Rec"])}, 256, {v(M_["Rec"])}')
        emit_sub(a, M_, U0, H0, P+8*j+4, rec+4*j+2, U1, H1, pre_mem=mem)
        CA = a.newlabel('CA')
        a(f's_add_u32 {s(sK)}, {s(sK)}, 1')
        a(f's_cmp_ge_u32 {s(sK)}, {s(sEv)}')
        a(f's_cbranch_scc0 {CA}')
        a(f's_call_b64 {s(sRet,2)}, {EVH}')
        a(f's_cmp_eq_u32 {s(sFlag)}, 0')
        a(f's_cbranch_scc1 {CA}')
        a('s_waitcnt vmcnt(4)')
        emit_front(a, M_, P+8*jn, rec+4*jn, U0, H0)
        a(f's_branch {LA[jn]}')
        a.label(CA)
        a('s_waitcnt vmcnt(4)')
        emit_sub(a, M_, U1, H1, P+8*jn, rec+4*jn, U0, H0)
        a(f's_add_u32 {s(sK)}, {s(sK)}, 1')
        a(f's_cmp_ge_u32 {s(sK)}, {s(sEv)}')
        a(f's_cbranch_scc0 {LA[jn]}')
        a(f's_call_b64 {s(sRet,2)}, {EVH}')
        a(f's_cmp_eq_u32 {s(sFlag)}, 0')
        a(f's_cbranch_scc1 {LA[jn]}')
        emit_front(a, M_, P+8*jn, rec+4*jn, U0, H0)
        if j < 3: pass
        else: a(f's_branch {LA[0]}')
    sMask, sE1, sE2, sE3 = M_['sMask'], M_['sE1'], M_['sE2'], M_['sE3']
    S, Nn, Mm, C, T = M_['S'], M_['N'], M_['M'], M_['C'], M_['T']
    D, W = M_['D'], M_['W']
    EVL = a.newlabel('EVL'); QEND = a.newlabel('QEND'); RET = a.newlabel('RET')
    a.label(EVH)
    a(f's_mov_b32 {s(sFlag)}, 0')
    a.label(EVL)
    a(f's_lshr_b64 {s(sMask,2)}, {s(sMask,2)}, 16')
    a(f's_cbranch_scc0 {QEND}')
    a(f's_mov_b32 {s(sEv)}, {s(sE1)}')
    a(f's_mov_b32 {s(sE1)}, {s(sE2)}')
    a(f's_mov_b32 {s(sE2)}, {s(sE3)}')
    a(f's_cmp_ge_u32 {s(sK)}, {s(sEv)}')
    a(f's_cbranch_scc1 {EVL}')
    a.label(RET)
    a(f's_setpc_b64 {s(sRet,2)}')
    a.label(QEND)
    for h in (0, 2): a(f'v_pk_mul_f32 {v(D+h,2)}, {v(S+h,2)}, {v(C+h,2)}')
    for h in (0, 2): a(f'v_pk_fma_f32 {v(D+h,2)}, {v(Mm+h,2)}, {s(M_["sEps"],2)}, {v(D+h,2)}')
    for h in (0, 2): a(f'v_pk_mul_f32 {v(W+h,2)}, {v(Nn+h,2)}, {v(C+h,2)}')
    a(f'v_min3_f32 {v(M_["MinM"])}, {v(M_["MinM"])}, {v(Mm)}, {v(Mm+1)}')
    a(f'v_maximum3_f32 {v(M_["MaxD"])}, {v(M_["MaxD"])}, {v(D)}, {v(D+1)}')
    a(f'v_min3_f32 {v(M_["MinM"])}, {v(M_["MinM"])}, {v(Mm+2)}, {v(Mm+3)}')
    a(f'v_maximum3_f32 {v(M_["MaxD"])}, {v(M_["MaxD"])}, {v(D+2)}, {v(D+3)}')
    for i in range(4): a(f'v_rcp_f32 {v(D+i)}, {v(D+i)}')
    a('s_nop 0')
    for h in (0, 2): a(f'v_pk_mul_f32 {v(W+h,2)}, {v(W+h,2)}, {v(D+h,2)}')
    for h in (0, 2): a(f'v_pk_fma_f32 {v(W+h,2)}, {v(W+h,2)}, {s(M_["s2m20"],2)}, {v(M_["Uf"]+h,2)}')
    a(f'v_maximum3_f32 {v(M_["Chk"])}, {v(M_["Chk"])}, |{v(W)}|, |{v(W+1)}|')
    a(f'v_maximum3_f32 {v(M_["Chk"])}, {v(M_["Chk"])}, |{v(W+2)}|, |{v(W+3)}|')
    for i in range(4): a(f'v_max_f32 {v(W+i)}, 0, {v(W+i)}')
    for h in (0, 2): a(f'v_pk_add_f32 {v(W+h,2)}, {v(W+h,2)}, {v(M_["Xf"]+h,2)}')
    a(f'v_cvt_pk_bf16_f32 {v(D)}, {v(W)}, {v(W+1)}')
    a(f'v_cvt_pk_bf16_f32 {v(D+1)}, {v(W+2)}, {v(W+3)}')
    a(f'buffer_store_dwordx2 {v(D,2)}, {v(M_["Out"])}, {s(M_["srdO"],4)}, 0 offen')
    a(f's_mov_b32 {s(sFlag)}, 1')
    a.label(SETUP)
    sNq, sQ = M_['sNq'], M_['sQ']
    a(f's_cmp_eq_u32 {s(sNq)}, 0')
    a(f's_cbranch_scc1 {END}')
    a(f's_sub_u32 {s(sNq)}, {s(sNq)}, 1')
    t0, t1, Q4 = M_['t0'], M_['t1'], M_['W']
    a(f'v_add_u32 {v(t0)}, {s(sQ)}, {v(M_["G4"])}')
    a(f'v_mov_b32 {v(t1)}, {s(sQ)}')
    a(f'ds_read_b32 {v(t0)}, {v(t0)} offset:{PERM}')
    a(f'ds_read_b128 {v(Q4,4)}, {v(t1)} offset:{DEGS}')
    a(f's_mov_b32 {s(sQ)}, {s(sQ+1)}')
    a(f's_mov_b32 {s(sQ+1)}, {s(sQ+2)}')
    a('s_waitcnt lgkmcnt(0)')
    a(f'v_and_b32 {v(t1)}, 15, {v(t0)}')
    a(f'v_xor_b32 {v(t1)}, {v(t1)}, {v(M_["Cc"])}')
    a(f'v_lshlrev_b32 {v(t1)}, 4, {v(t1)}')
    a(f'v_lshl_add_u32 {v(t1)}, {v(t0)}, 8, {v(t1)}')
    a(f'ds_read_b128 {v(D,4)}, {v(t1)} offset:{AREG}')
    a(f'ds_read_b128 {v(T,4)}, {v(t1)} offset:{XUREG}')
    a(f'v_readfirstlane_b32 {s(sEv)}, {v(Q4+3)}')
    a(f'v_readfirstlane_b32 {s(sE1)}, {v(Q4+2)}')
    a(f'v_readfirstlane_b32 {s(sE2)}, {v(Q4+1)}')
    a(f'v_readfirstlane_b32 {s(sE3)}, {v(Q4)}')
    a(f'v_lshlrev_b32 {v(M_["Out"])}, 9, {v(t0)}')
    a(f'v_lshl_add_u32 {v(M_["Out"])}, {v(M_["Cc"])}, 3, {v(M_["Out"])}')
    a(f'v_cmp_gt_u32 vcc, {s(M_["sNv"])}, {v(t0)}')
    for h in (0, 2): a(f'v_pk_mov_b32 {v(S+h,2)}, 0, 0')
    a(f'v_cndmask_b32 {v(M_["Out"])}, -1, {v(M_["Out"])}, vcc')
    for h in (0, 2): a(f'v_pk_mov_b32 {v(Nn+h,2)}, 0, 0')
    for h in (0, 2): a(f'v_pk_mov_b32 {v(Mm+h,2)}, 1.0, 1.0')
    a(f's_mov_b64 {s(sMask,2)}, -1')
    a(f's_mov_b32 {s(sK)}, 0')
    a('s_waitcnt lgkmcnt(0)')
    A2 = M_['A2']
    a(f'v_mfma_f32_4x4x4_16b_bf16 {v(M_["Xf"],4)}, {v(M_["I"],2)}, {v(T,2)}, 0')
    a(f'v_mfma_f32_4x4x4_16b_bf16 {v(M_["Uf"],4)}, {v(M_["I"],2)}, {v(T+2,2)}, 0')
    for i in range(4): a(f'v_min_f32 {v(A2+i)}, 0, {v(D+i)}')
    for h in (0, 2): a(f'v_pk_add_f32 {v(A2+h,2)}, {v(A2+h,2)}, -1.0 op_sel_hi:[1,0]')
    for h in (0, 2): a(f'v_pk_add_f32 {v(C+h,2)}, {v(A2+h,2)}, {v(D+h,2)} neg_lo:[0,1] neg_hi:[0,1]')
    a('s_nop 0')
    for i in range(4): a(f'v_exp_f32 {v(C+i)}, {v(C+i)}')
    a(f's_cmp_eq_u32 {s(sEv)}, 0')
    a(f's_cbranch_scc0 {RET}')
    EV0 = a.newlabel('EV0')
    a.label(EV0)
    a(f's_lshr_b64 {s(sMask,2)}, {s(sMask,2)}, 16')
    a(f's_cbranch_scc0 {QEND}')
    a(f's_mov_b32 {s(sEv)}, {s(sE1)}')
    a(f's_mov_b32 {s(sE1)}, {s(sE2)}')
    a(f's_mov_b32 {s(sE2)}, {s(sE3)}')
    a(f's_cmp_eq_u32 {s(sEv)}, 0')
    a(f's_cbranch_scc1 {EV0}')
    a(f's_setpc_b64 {s(sRet,2)}')

def build_k2(name, addtid=False, debug=False):
    a = Asm()
    END = a.newlabel('K2END'); FIN = a.newlabel('K2FIN')
    srdX, srdW, srdCnt, srdF, srdP, srdO = 16, 20, 24, 28, 32, 36
    sMk = 40
    sWave, sR, sSl, sTile, sFh, sA, sB, sC, sT = 3, 56, 57, 58, 59, 60, 61, 62, 66
    vLane, vXoff, vWoff, vT, vT2 = 1, 2, 3, 4, 5
    vCnt, vRec, vRank = 8, 12, 28
    a(f'''s_cmp_ge_u32 s2, 256
    s_cbranch_scc1 {END}
    s_load_dwordx2 s[4:5], s[0:1], 0
    s_load_dwordx2 s[6:7], s[0:1], 32
    s_load_dwordx4 s[8:11], s[0:1], 48
    s_load_dwordx2 s[12:13], s[0:1], 72
    s_load_dwordx2 s[14:15], s[0:1], 88
    v_readfirstlane_b32 {s(sWave)}, v0
    v_and_b32 {v(vLane)}, 63, v0
    s_and_b32 {s(sT)}, s2, 7
    s_lshr_b32 {s(sSl)}, {s(sT)}, 1
    s_and_b32 {s(sT)}, {s(sT)}, 1
    s_lshr_b32 {s(sR)}, s2, 3
    s_lshl_b32 {s(sR)}, {s(sR)}, 1
    s_or_b32 {s(sR)}, {s(sR)}, {s(sT)}
    s_lshr_b32 {s(sWave)}, {s(sWave)}, 6''')
    a(f'''v_lshlrev_b32 {v(vT)}, 2, v0
    v_mov_b32 {v(vT2)}, 0
    v_cmp_gt_u32 vcc, 256, v0
    s_and_saveexec_b64 s[40:41], vcc
    ds_write_b32 {v(vT)}, {v(vT2)}
    s_mov_b64 exec, s[40:41]''')
    emit_dma_setup(a, vLane, vXoff, vWoff, vT, sWave, sT)
    a('s_waitcnt lgkmcnt(0)')
    a(f'''s_lshl_b32 {s(sT)}, {s(sR)}, 10
    s_add_u32 {s(sT)}, {s(sT)}, {COFF}
    s_add_u32 {s(sT+2)}, s14, {s(sT)}
    s_addc_u32 {s(sT+3)}, s15, 0''')
    srd(a, srdCnt, s(sT+2), s(sT+3), NCH*4)
    a(f'''s_lshl_b32 {s(sT)}, {s(sR)}, 16
    s_add_u32 {s(sT)}, {s(sT)}, {FOFF}
    s_add_u32 {s(sT+2)}, s14, {s(sT)}
    s_addc_u32 {s(sT+3)}, s15, 0''')
    srd(a, srdF, s(sT+2), s(sT+3), NCH*256)
    a(f'''v_lshrrev_b32 {v(vT)}, 4, {v(vLane)}
    v_lshlrev_b32 {v(vT2)}, 4, {v(vT)}
    s_lshl_b32 {s(sT)}, {s(sWave)}, 6
    buffer_load_dwordx4 {v(vCnt,4)}, {v(vT2)}, {s(srdCnt,4)}, {s(sT)} offen
    v_lshlrev_b32 {v(vT2)}, 10, {v(vT)}
    v_and_b32 {v(vT)}, 15, {v(vLane)}
    v_lshl_add_u32 {v(vT2)}, {v(vT)}, 4, {v(vT2)}
    s_lshl_b32 {s(sT)}, {s(sWave)}, 12''')
    for i in range(4):
        a(f'buffer_load_dwordx4 {v(vRec+4*i,4)}, {v(vT2)}, {s(srdF,4)}, {s(sT)} offen offset:{i*256}')
    a(f'''s_mul_i32 {s(sT)}, {s(sR)}, {RNG*512}
    s_add_u32 s4, s4, {s(sT)}
    s_addc_u32 s5, s5, 0
    s_sub_u32 {s(sT+1)}, {N*512}, {s(sT)}''')
    srd(a, srdX, 's4', 's5', s(sT+1))
    a(f'''s_lshl_b32 {s(sT)}, {s(sSl)}, 7
    s_add_u32 s6, s6, {s(sT)}
    s_addc_u32 s7, s7, 0
    s_add_u32 s10, s10, {s(sT)}
    s_addc_u32 s11, s11, 0
    s_sub_u32 {s(sT+1)}, {256*512}, {s(sT)}
    s_cmp_ge_u32 {s(sWave)}, 8
    s_cselect_b32 s6, s10, s6
    s_cselect_b32 s7, s11, s7''')
    srd(a, srdW, 's6', 's7', s(sT+1))
    emit_dma(a, vXoff, vWoff, srdX, srdW, sWave, sA, sB, sC)
    a('s_waitcnt lgkmcnt(0)')
    a('s_barrier')
    LW = a.newlabel('W8'); LW2 = a.newlabel('W12')
    a(f's_cmp_ge_u32 {s(sWave)}, 4\n s_cbranch_scc1 {LW}\n s_waitcnt vmcnt(12)\n s_branch {LW2}')
    a.label(LW); a('s_waitcnt vmcnt(8)'); a.label(LW2)
    vSlot, vOne, vAd = 4, 5, 6
    a(f'''v_and_b32 {v(vSlot)}, 15, {v(vLane)}
    v_lshlrev_b32 {v(vSlot)}, 1, {v(vSlot)}
    v_mov_b32 {v(vOne)}, 1
    v_max3_u32 {v(vAd)}, {v(vCnt)}, {v(vCnt+1)}, {v(vCnt+2)}
    v_max_u32 {v(vAd)}, {v(vAd)}, {v(vCnt+3)}
    v_cmp_lt_u32 vcc, {CAP}, {v(vAd)}''')
    LNF = a.newlabel('NOF')
    a(f's_cbranch_vccz {LNF}')
    a(f'v_mov_b32 {v(vAd)}, 0\n ds_write_b32 {v(vAd)}, {v(vOne)} offset:{FLAG}')
    a.label(LNF)
    for i in range(4):
        a(f'v_cmp_gt_u32 {s(sMk+4*i,2)}, {v(vCnt+i)}, {v(vSlot)}')
    a(f'v_add_u32 {v(vSlot)}, 1, {v(vSlot)}')
    for i in range(4):
        a(f'v_cmp_gt_u32 {s(sMk+4*i+2,2)}, {v(vCnt+i)}, {v(vSlot)}')
    for i in range(4):
        for b_ in range(2):
            w0 = vRec + 4*i + 2*b_
            a(f'v_and_b32 {v(vAd+b_)}, 0xff, {v(w0)}')
            a(f'v_lshlrev_b32 {v(vAd+b_)}, 2, {v(vAd+b_)}')
            a(f's_mov_b64 exec, {s(sMk+4*i+2*b_,2)}')
            a(f'ds_add_rtn_u32 {v(vRank+2*i+b_)}, {v(vAd+b_)}, {v(vOne)} offset:{DEG}')
            a('s_mov_b64 exec, -1')
    a('s_waitcnt vmcnt(0) lgkmcnt(0)')
    a('s_barrier')
    LS2 = a.newlabel('S2'); LB3 = a.newlabel('B3'); LG = a.newlabel('G')
    a(f's_cmp_eq_u32 {s(sWave)}, 15\n s_cbranch_scc1 {LS2}')
    a(f's_cmp_ge_u32 {s(sWave)}, 10\n s_cbranch_scc1 {LB3}')
    a(f'''s_cmp_ge_u32 {s(sWave)}, 5
    s_cselect_b32 {s(sFh)}, 1, 0
    s_mul_i32 {s(sT)}, {s(sFh)}, 5
    s_sub_u32 {s(sTile)}, {s(sWave)}, {s(sT)}''')
    vXa, vWa, ring, acc0, acc1, vXp = 36, 40, 44, 80, 96, 112
    emit_frag_addrs(a, vLane, vXa, vWa, 120, 121, sTile, sFh, sT)
    for i in range(16):
        a(f'v_mov_b32 {v(acc0+i)}, 0')
        a(f'v_mov_b32 {v(acc1+i)}, 0')
    emit_mfma_loop(a, vXa, vWa, ring, acc0, acc1)
    a(f'''v_lshrrev_b32 v120, 1, {v(vLane)}
    v_and_b32 v120, 7, v120
    s_lshl_b32 {s(sT)}, {s(sFh)}, 2
    v_xor_b32 v120, {s(sT)}, v120
    v_and_b32 v121, 31, {v(vLane)}
    v_lshlrev_b32 v121, 7, v121
    v_lshrrev_b32 v122, 5, {v(vLane)}
    v_lshl_add_u32 v121, v122, 3, v121
    s_mul_i32 {s(sT)}, {s(sSl)}, {XKC}
    s_lshl_b32 {s(sT+1)}, {s(sTile)}, 12
    s_add_u32 {s(sT)}, {s(sT)}, {s(sT+1)}
    s_add_u32 {s(sT)}, {s(sT)}, {XBASE}
    v_add_u32 v121, {s(sT)}, v121''')
    for i in range(4):
        a(f'v_xor_b32 v122, {i}, v120')
        a(f'v_lshl_add_u32 v122, v122, 4, v121')
        a(f'ds_read_b64 {v(vXp+2*i,2)}, v122')
    a('s_waitcnt lgkmcnt(0)')
    a(f's_branch {LB3}')
    a.label(LS2)
    emit_step2(a, vLane, 44, sT)
    a.label(LB3)
    a('s_barrier')
    LSC = a.newlabel('SCAT')
    a(f's_cmp_ge_u32 {s(sWave)}, 10\n s_cbranch_scc1 {LSC}')
    a(f'''v_and_b32 v120, 15, {v(vLane)}
    v_lshrrev_b32 v121, 5, {v(vLane)}
    s_lshl_b32 {s(sT)}, {s(sFh)}, 3
    v_or_b32 v121, {s(sT)}, v121
    v_xor_b32 v120, v120, v121
    v_and_b32 v121, 31, {v(vLane)}
    v_lshlrev_b32 v121, 8, v121
    s_lshl_b32 {s(sT)}, {s(sTile)}, 13
    v_add_u32 v121, {s(sT)}, v121
    s_mov_b32 {s(sT+2)}, {hex(NEG_LOG2E)}
    s_mov_b32 {s(sT+3)}, {hex(NEG_LOG2E)}''')
    for i in range(4):
        o = ring + 4*i
        a(f'v_pk_mul_f32 {v(acc0+4*i,2)}, {v(acc0+4*i,2)}, {s(sT+2,2)}')
        a(f'v_pk_mul_f32 {v(acc0+4*i+2,2)}, {v(acc0+4*i+2,2)}, {s(sT+2,2)}')
        a(f'v_mov_b32 {v(o)}, {v(vXp+2*i)}')
        a(f'v_mov_b32 {v(o+1)}, {v(vXp+2*i+1)}')
        a(f'v_cvt_pk_bf16_f32 {v(o+2)}, {v(acc1+4*i)}, {v(acc1+4*i+1)}')
        a(f'v_cvt_pk_bf16_f32 {v(o+3)}, {v(acc1+4*i+2)}, {v(acc1+4*i+3)}')
        a(f'v_xor_b32 v122, {2*i}, v120')
        a(f'v_lshl_add_u32 v122, v122, 4, v121')
        a(f'ds_write_b128 v122, {v(acc0+4*i,4)} offset:{AREG}')
        a(f'ds_write_b128 v122, {v(o,4)} offset:{XUREG}')
    a.label(LSC)
    sc = 60
    for i in range(4):
        for b_ in range(2):
            w0 = vRec + 4*i + 2*b_; k = 2*i + b_
            a(f'v_and_b32 {v(sc+k)}, 0xff, {v(w0)}')
            a(f'v_lshlrev_b32 {v(sc+k)}, 2, {v(sc+k)}')
            a(f'ds_read_b32 {v(sc+k)}, {v(sc+k)} offset:{NBASE}')
    a('s_waitcnt lgkmcnt(0)')
    for i in range(4):
        for b_ in range(2):
            w0 = vRec + 4*i + 2*b_; k = 2*i + b_; nb = sc + k; rk = vRank + k
            t = sc + 8
            a(f'v_and_b32 {v(w0)}, 0xffffff00, {v(w0)}')
            if addtid:
                a(f'v_lshrrev_b32 {v(t)}, 24, {v(nb)}')
                a(f'v_lshl_add_u32 {v(w0)}, {v(t)}, 8, {v(w0)}')
            a(f'v_and_b32 {v(nb)}, 0xffffff, {v(nb)}')
            a(f'v_lshrrev_b32 {v(t)}, 1, {v(rk)}')
            a(f'v_lshl_add_u32 {v(nb)}, {v(t)}, 6, {v(nb)}')
            a(f'v_and_b32 {v(t)}, 1, {v(rk)}')
            a(f'v_lshl_add_u32 {v(nb)}, {v(t)}, 3, {v(nb)}')
            a(f's_mov_b64 exec, {s(sMk+4*i+2*b_,2)}')
            a(f'ds_write_b64 {v(nb)}, {v(w0,2)}')
            a('s_mov_b64 exec, -1')
    LPE = a.newlabel('PADE'); LTail = a.newlabel('TAIL')
    a(f's_cmp_lt_u32 {s(sWave)}, 10\n s_cbranch_scc1 {LPE}')
    a(f's_cmp_eq_u32 {s(sWave)}, 13\n s_cbranch_scc1 {LTail}')
    a(f's_cmp_gt_u32 {s(sWave)}, 13\n s_cbranch_scc1 {LPE}')
    p = 72
    a(f'''s_sub_u32 {s(sT)}, {s(sWave)}, 10
    s_lshl_b32 {s(sT)}, {s(sT)}, 6
    v_add_u32 {v(p)}, {s(sT)}, {v(vLane)}
    v_cmp_gt_u32 vcc, 160, {v(p)}
    s_and_saveexec_b64 s[40:41], vcc
    s_cbranch_execz {LPE}
    v_lshlrev_b32 {v(p)}, 2, {v(p)}
    ds_read_b32 {v(p+1)}, {v(p)} offset:{DEG}
    ds_read_b32 {v(p+2)}, {v(p)} offset:{NPAD}
    ds_read_b32 {v(p+3)}, {v(p)} offset:{NBASE}
    s_waitcnt lgkmcnt(0)''')
    if addtid:
        a(f'v_lshrrev_b32 {v(p+4)}, 24, {v(p+3)}\n v_lshlrev_b32 {v(p+4)}, 8, {v(p+4)}')
    else:
        a(f'v_mov_b32 {v(p+4)}, 0')
    a(f'v_mov_b32 {v(p+5)}, 0\n v_and_b32 {v(p+3)}, 0xffffff, {v(p+3)}')
    LPL = a.newlabel('PADL')
    a.label(LPL)
    a(f'''v_cmp_lt_u32 vcc, {v(p+1)}, {v(p+2)}
    s_and_b64 exec, exec, vcc
    s_cbranch_execz {LPE}
    v_lshrrev_b32 {v(p+6)}, 1, {v(p+1)}
    v_lshl_add_u32 {v(p+7)}, {v(p+6)}, 6, {v(p+3)}
    v_and_b32 {v(p+6)}, 1, {v(p+1)}
    v_lshl_add_u32 {v(p+7)}, {v(p+6)}, 3, {v(p+7)}
    ds_write_b64 {v(p+7)}, {v(p+4,2)}
    v_add_u32 {v(p+1)}, 1, {v(p+1)}
    s_branch {LPL}''')
    a.label(LTail)
    a(f'''v_mov_b32 {v(p)}, 0
    ds_read_b32 {v(p)}, {v(p)} offset:{TOTS}
    v_and_b32 {v(p+1)}, 3, {v(vLane)}
    v_sub_u32 {v(p+1)}, 3, {v(p+1)}''')
    if addtid: a(f'v_lshlrev_b32 {v(p+4)}, 8, {v(p+1)}')
    else: a(f'v_mov_b32 {v(p+4)}, 0')
    a(f'''v_mov_b32 {v(p+5)}, 0
    v_mov_b32 {v(p+6)}, {v(p+4)}
    v_mov_b32 {v(p+7)}, 0
    s_waitcnt lgkmcnt(0)
    v_min_u32 {v(p)}, {STREAM_CAP}, {v(p)}
    v_lshlrev_b32 {v(p)}, 6, {v(p)}
    v_lshl_add_u32 {v(p)}, {v(vLane)}, 4, {v(p)}
    v_add_u32 {v(p)}, {STREAM}, {v(p)}
    s_mov_b32 exec_hi, 0
    ds_write_b128 {v(p)}, {v(p+4,4)}''')
    a.label(LPE)
    a('s_mov_b64 exec, -1')
    a('s_waitcnt lgkmcnt(0)')
    a('s_barrier')
    a(f'v_mov_b32 v4, 0\n ds_read_b32 v5, v4 offset:{FLAG}')
    M_ = dict(Wc=8, A2=12, C=16, S=20, N=24, M=28, Uf=32, Xf=36, I=40, I20=42, Rec=44, L16=45, G4=46, Cc=47, Out=48,
              MinM=49, MaxD=50, Chk=51, t0=52, t1=53, rec=56, P=72, U0=104, U1=108, H0=112, H1=116, T=120, D=124, W=4,
              srdP=srdP, srdO=srdO, sMask=72, sK=74, sEv=75, sE1=76, sE2=77, sE3=78, sFlag=79, sRet=80, sNq=82, sQ=83,
              sEps=86, s2m20=88, sNv=90)
    a('s_waitcnt lgkmcnt(0)')
    a(f'v_readfirstlane_b32 {s(sT)}, v5')
    a(f'''s_mul_i32 {s(sT+1)}, {s(sSl)}, {PS}
    s_add_u32 {s(sT+1)}, {s(sT+1)}, {POFF - (768 if addtid else 0)}
    s_add_u32 {s(sT+2)}, s14, {s(sT+1)}
    s_addc_u32 {s(sT+3)}, s15, 0''')
    if addtid:
        a(f's_mov_b32 {s(srdP)}, {s(sT+2)}\n s_and_b32 {s(srdP+1)}, {s(sT+3)}, 0xffff\n s_or_b32 {s(srdP+1)}, {s(srdP+1)}, 0x00100000\n s_mov_b32 {s(srdP+2)}, 64\n s_mov_b32 {s(srdP+3)}, 0x00800000')
    else:
        srd(a, srdP, s(sT+2), s(sT+3), PS)
    a(f'''s_mul_i32 {s(sT+1)}, {s(sR)}, {RNG*512}
    s_lshl_b32 {s(sT+2)}, {s(sSl)}, 7
    s_add_u32 {s(sT+1)}, {s(sT+1)}, {s(sT+2)}
    s_add_u32 s12, s12, {s(sT+1)}
    s_addc_u32 s13, s13, 0
    s_sub_u32 {s(sT+2)}, {N*512}, {s(sT+1)}''')
    srd(a, srdO, 's12', 's13', s(sT+2))
    a(f'''s_mul_i32 {s(sT+1)}, {s(sR)}, {RNG}
    s_sub_u32 {s(sT+1)}, {N}, {s(sT+1)}
    s_min_u32 {s(M_["sNv"])}, {s(sT+1)}, {RNG}
    s_mov_b32 {s(M_["sEps"])}, {hex(EPS_BITS)}
    s_mov_b32 {s(M_["sEps"]+1)}, {hex(EPS_BITS)}
    s_mov_b32 {s(M_["s2m20"])}, 0x35800000
    s_mov_b32 {s(M_["s2m20"]+1)}, 0x35800000''')
    a(f's_cmp_lg_u32 {s(sT)}, 0')
    a(f's_cbranch_scc1 {FIN}')
    a(f'''v_and_b32 {v(M_["Cc"])}, 15, {v(vLane)}
    v_lshlrev_b32 v4, 3, {v(M_["Cc"])}
    s_lshl_b32 {s(sT)}, {s(sSl)}, 7
    s_add_u32 s8, s8, {s(sT)}
    s_addc_u32 s9, s9, 0
    global_load_dwordx2 v[6:7], v4, s[8:9]
    v_lshrrev_b32 v5, 4, {v(vLane)}
    v_lshlrev_b32 {v(M_["G4"])}, 2, v5
    v_lshlrev_b32 {v(M_["L16"])}, 4, {v(M_["Cc"])}
    v_and_b32 v4, 3, {v(vLane)}
    v_mov_b32 {v(M_["I"])}, 0
    v_mov_b32 {v(M_["I"]+1)}, 0
    v_mov_b32 {v(M_["I20"])}, 0
    v_mov_b32 {v(M_["I20"]+1)}, 0''')
    for i, (reg, sh) in enumerate([(0, 0), (0, 16), (1, 0), (1, 16)]):
        a(f'v_cmp_eq_u32 vcc, {i}, v4')
        a(f's_mov_b64 exec, vcc')
        a(f'v_mov_b32 {v(M_["I"]+reg)}, {hex(0x3F80 << sh)}')
        a(f'v_mov_b32 {v(M_["I20"]+reg)}, {hex(0x4980 << sh)}')
        a('s_mov_b64 exec, -1')
    a(f'''s_lshr_b32 {s(sT)}, {s(sWave)}, 2
    s_and_b32 {s(sT+1)}, {s(sWave)}, 3
    s_lshr_b32 {s(sT+2)}, {s(sT)}, 1
    s_add_u32 {s(M_["sNq"])}, {s(sT+2)}, 2
    s_mul_i32 {s(sT+1)}, {s(sT+1)}, {s(M_["sNq"])}
    s_lshl_b32 {s(sT+2)}, {s(sT)}, 3
    s_add_u32 {s(sT+1)}, {s(sT+1)}, {s(sT+2)}
    s_cmp_eq_u32 {s(sT)}, 3
    s_cselect_b32 {s(sT+2)}, 4, 0
    s_add_u32 {s(sT+1)}, {s(sT+1)}, {s(sT+2)}
    s_lshl_b32 {s(sT+1)}, {s(sT+1)}, 2
    v_mov_b32 v4, {s(sT+1)}
    ds_read_b32 {v(M_["Rec"])}, v4 offset:{OFFO}
    ds_read_b32 v52, v4 offset:{QOF}
    ds_read_b32 v53, v4 offset:{QOF+4}
    ds_read_b32 v54, v4 offset:{QOF+8}
    v_mov_b32 {v(M_["MinM"])}, 1.0
    v_mov_b32 {v(M_["MaxD"])}, 0
    v_mov_b32 {v(M_["Chk"])}, 0
    s_waitcnt lgkmcnt(0)
    v_readfirstlane_b32 {s(M_["sQ"])}, v52
    v_readfirstlane_b32 {s(M_["sQ"]+1)}, v53
    v_readfirstlane_b32 {s(M_["sQ"]+2)}, v54
    v_lshlrev_b32 {v(M_["Rec"])}, 6, {v(M_["Rec"])}
    v_lshl_add_u32 {v(M_["Rec"])}, v5, 4, {v(M_["Rec"])}
    v_add_u32 {v(M_["Rec"])}, {STREAM}, {v(M_["Rec"])}
    s_lshl_b32 {s(M_["sQ"])}, {s(M_["sQ"])}, 4
    s_lshl_b32 {s(M_["sQ"]+1)}, {s(M_["sQ"]+1)}, 4
    s_lshl_b32 {s(M_["sQ"]+2)}, {s(M_["sQ"]+2)}, 4
    s_mov_b32 {s(sT+2)}, {hex(NEG_LOG2E)}
    s_waitcnt vmcnt(0)
    v_lshlrev_b32 {v(M_["Wc"])}, 16, v6
    v_and_b32 {v(M_["Wc"]+1)}, 0xffff0000, v6
    v_lshlrev_b32 {v(M_["Wc"]+2)}, 16, v7
    v_and_b32 {v(M_["Wc"]+3)}, 0xffff0000, v7''')
    for i in range(4): a(f'v_mul_f32 {v(M_["Wc"]+i)}, {s(sT+2)}, {v(M_["Wc"]+i)}')
    WEND = a.newlabel('WEND')
    emit_main(a, M_, addtid, WEND)
    a.label(WEND)
    a(f'''v_cmp_eq_f32 vcc, 0, {v(M_["MinM"])}
    v_mov_b32 v4, 0x207
    v_cmp_class_f32 s[40:41], {v(M_["MaxD"])}, v4
    v_cmp_class_f32 s[42:43], {v(M_["Chk"])}, v4
    s_nop 1
    s_or_b64 vcc, vcc, s[40:41]
    s_or_b64 vcc, vcc, s[42:43]
    s_cbranch_vccz {FIN}
    v_mov_b32 v4, 0
    v_mov_b32 v5, 1
    ds_write_b32 v4, v5 offset:{FLAG}''')
    a.label(FIN)
    a('s_waitcnt vmcnt(0) lgkmcnt(0)')
    a('s_barrier')
    a(f'''v_mov_b32 v4, 0
    ds_read_b32 v5, v4 offset:{FLAG}
    s_load_dwordx2 s[4:5], s[0:1], 80
    s_waitcnt lgkmcnt(0)
    v_readfirstlane_b32 {s(sT)}, v5
    s_cmp_eq_u32 {s(sT)}, 0
    s_cbranch_scc1 {END}
    v_mov_b32 v5, 1
    global_store_dword v4, v5, s[4:5]''')
    a.label(END)
    a('s_endpgm')
    txt = header(name) + a.text() + descriptor(name, 128, 96)
    txt = txt.replace('.amdhsa_float_denorm_mode_32 3', '.amdhsa_float_denorm_mode_32 0')
    return txt
```

```python
import sys
sys.path.insert(0,'gen')
from consts import *
import k1, k2
HEADC = open('gather_scatter__edge_featured_mpnn_gatedgcn__graph.s.ref').read().split('\n')
comments = [l for l in HEADC if l.startswith(';') and '@launch' not in l and 'Override' not in l and 'grid=ceil' not in l]
def assemble(launches, bodies, out):
    txt = '\n'.join(comments) + '\n'
    for (k, g, b, lds) in launches:
        txt += f'; @launch kernel={k} grid=({g},1,1) block=({b},1,1) lds={lds}\n'
    txt += '.amdgcn_target "amdgcn-amd-amdhsa--gfx950"\n.text\n' + ''.join(bodies)
    open(out,'w').write(txt)
if __name__ == '__main__':
    addtid = len(sys.argv) > 1 and sys.argv[1] == 'addtid'
    assemble([('gs_k1_kernel',256,1024,LDS_TOTAL)], [k1.build_k1('gs_k1_kernel')], 'k1only.s')
    assemble([('gs_k1_kernel',256,1024,LDS_TOTAL),('gs_k2_kernel',256,1024,LDS_TOTAL)], [k1.build_k1('gs_k1_kernel'), k2.build_k2('gs_k2_kernel', addtid)], 'k12.s')
```
